```python
import torch

def _softmax(x, axis=-1):
    return torch.softmax(x, dim=axis)
def _gelu(x):
    return torch.nn.functional.gelu(x, approximate="tanh")
def _silu(x):
    return torch.nn.functional.silu(x)
def _sigmoid(x):
    return torch.sigmoid(x)
def _layernorm(x, axis=-1, eps=1e-5):
    m = x.mean(dim=axis, keepdim=True)
    v = x.var(dim=axis, keepdim=True, unbiased=False)
    return (x - m) / torch.sqrt(v + eps)
def _scatter_add(tgt, idx, src, axis=0):
    return tgt.clone().index_add_(axis, idx, src)
def _segment_sum(src, seg, n):
    out = torch.zeros((n,) + src.shape[1:], dtype=src.dtype)
    return out.index_add_(0, seg, src)
def _pad(x, pw):
    flat = tuple(v for pair in reversed(pw) for v in pair)
    return torch.nn.functional.pad(x, flat)

kernel_name = 'concat_heads__gqa_block_cached__gqa_block_cached__near_ridge'

def setup_inputs():

    _w = (lambda a: (lambda t: t.to(torch.bfloat16) if t.is_floating_point() else t)(torch.as_tensor(a)))
    def _A_setup():
        B, Sq, D = 32, 96, 576
        Hq, Hkv, Sk, Dh = 32, 16, 512, 128
        assert Hq % Hkv == 0, (Hq, Hkv)
        return {
            "x": _w((lambda *s: torch.randn(*s, dtype=torch.bfloat16) * 0.8)(B, Sq, D)),
            "k_cache": _w((lambda *s: torch.randn(*s, dtype=torch.bfloat16) * 0.8)(B, Hkv, Sk, Dh)),
            "v_cache": _w((lambda *s: torch.randn(*s, dtype=torch.bfloat16) * 0.05)(B, Hkv, Sk, Dh)),
            "wq": _w((lambda *s: torch.randn(*s, dtype=torch.bfloat16) * 0.8)(D, Hq * Dh) * (D ** -0.5)),
            "wo": _w((lambda *s: torch.randn(*s, dtype=torch.bfloat16) * 0.05)(Hq * Dh, D) * ((Hq * Dh) ** -0.5)),
        }
    _A_in = _A_setup()

    def _B_setup():
        B, Sq, D = 32, 96, 576
        Hq, Hkv, Sk, Dh = 32, 16, 512, 128
        assert Hq % Hkv == 0, (Hq, Hkv)
        return {
            "x": _w((lambda *s: torch.randn(*s, dtype=torch.bfloat16) * 0.8)(B, Sq, D)),
            "k_cache": _w((lambda *s: torch.randn(*s, dtype=torch.bfloat16) * 0.8)(B, Hkv, Sk, Dh)),
            "v_cache": _w((lambda *s: torch.randn(*s, dtype=torch.bfloat16) * 0.05)(B, Hkv, Sk, Dh)),
            "wq": _w((lambda *s: torch.randn(*s, dtype=torch.bfloat16) * 0.8)(D, Hq * Dh) * (D ** -0.5)),
            "wo": _w((lambda *s: torch.randn(*s, dtype=torch.bfloat16) * 0.05)(Hq * Dh, D) * ((Hq * Dh) ** -0.5)),
        }
    _B_in = _B_setup()

    return {
        "A_x": _A_in["x"],
        "A_k_cache": _A_in["k_cache"],
        "A_v_cache": _A_in["v_cache"],
        "A_wq": _A_in["wq"],
        "A_wo": _A_in["wo"],
        "B_x": _B_in["x"],
        "B_k_cache": _B_in["k_cache"],
        "B_v_cache": _B_in["v_cache"],
        "B_wq": _B_in["wq"],
        "B_wo": _B_in["wo"],
    }

def reference(A_x, A_k_cache, A_v_cache, A_wq, A_wo, B_x, B_k_cache, B_v_cache, B_wq, B_wo):
    def _A_ref(x, k_cache, v_cache, wq, wo):
        B, Sq, D = x.shape
        Hq, Dh = 32, 128
        Hkv = k_cache.shape[1]
        rep = Hq // Hkv
        q = (lambda x, *d: x.permute(*d))((x @ wq).reshape(B, Sq, Hq, Dh), 0, 2, 1, 3)
        k = (lambda x, n, axis: torch.repeat_interleave(x, n, dim=axis))(k_cache, rep, axis=1)
        v = (lambda x, n, axis: torch.repeat_interleave(x, n, dim=axis))(v_cache, rep, axis=1)
        scores = torch.einsum("bhqd,bhkd->bhqk", q, k) * (Dh ** -0.5)
        p = _softmax(scores, axis=-1)
        o = torch.einsum("bhqk,bhkd->bhqd", p, v)
        return (lambda x, *d: x.permute(*d))(o, 0, 2, 1, 3).reshape(B, Sq, Hq * Dh) @ wo

    def _B_ref(x, k_cache, v_cache, wq, wo):
        B, Sq, D = x.shape
        Hq, Dh = 32, 128
        Hkv = k_cache.shape[1]
        rep = Hq // Hkv
        q = (lambda x, *d: x.permute(*d))((x @ wq).reshape(B, Sq, Hq, Dh), 0, 2, 1, 3)
        k = (lambda x, n, axis: torch.repeat_interleave(x, n, dim=axis))(k_cache, rep, axis=1)
        v = (lambda x, n, axis: torch.repeat_interleave(x, n, dim=axis))(v_cache, rep, axis=1)
        scores = torch.einsum("bhqd,bhkd->bhqk", q, k) * (Dh ** -0.5)
        p = _softmax(scores, axis=-1)
        o = torch.einsum("bhqk,bhkd->bhqd", p, v)
        return (lambda x, *d: x.permute(*d))(o, 0, 2, 1, 3).reshape(B, Sq, Hq * Dh) @ wo

    a = _A_ref(A_x, A_k_cache, A_v_cache, A_wq, A_wo)
    b = _B_ref(B_x, B_k_cache, B_v_cache, B_wq, B_wo)
    return torch.concatenate([a, b], axis=-1)
```

```python
import re

def vr(base, n=1, f='v'):
    return f"{f}{base}" if n == 1 else f"{f}[{base}:{base+n-1}]"

class R:
    __slots__ = ('f', 'b', 'n')
    def __init__(self, f, b, n=1):
        self.f, self.b, self.n = f, b, n
    def __str__(self):
        return vr(self.b, self.n, self.f)
    def regs(self):
        return [f"{self.f}{i}" for i in range(self.b, self.b + self.n)]
    def __getitem__(self, i):
        if isinstance(i, slice):
            st, en = i.start or 0, i.stop if i.stop is not None else self.n
            return R(self.f, self.b + st, en - st)
        assert 0 <= i < self.n
        return R(self.f, self.b + i, 1)

def regs_of(xs):
    out = []
    for x in xs:
        if x is None: continue
        if isinstance(x, R): out += x.regs()
        elif isinstance(x, str): out.append(x)
        elif isinstance(x, (list, tuple)): out += regs_of(x)
    return out

COST = {'valu': 4, 'trans': 8, 'ds_rd': 4, 'ds_wr': 8, 'vmem': 8, 'dma': 8, 'salu': 4, 'wait': 4, 'barrier': 4,
        'nop': 4, 'mfma16': 8, 'mfma32': 8, 'branch': 4, 'label': 0, 'perm': 4, 'comment': 0}

class I:
    __slots__ = ('text', 'kind', 'rd', 'wr', 'cost', 'srcc', 'lead', 'wait_lgkm', 'pre_nop', 'idx', 'tag', 'fixed_after', 'prio', 'nb')
    def __init__(self, text, kind, rd=(), wr=(), cost=None, srcc=None, lead=0, tag=None):
        self.text, self.kind = text, kind
        self.rd, self.wr = regs_of(rd), regs_of(wr)
        self.cost = COST[kind] if cost is None else cost
        self.srcc = regs_of([srcc]) if srcc is not None else []
        self.lead = lead
        self.wait_lgkm = None
        self.pre_nop = 0
        self.tag = tag
        self.prio = 0
        self.nb = 0
    def is_mfma(self):
        return self.kind in ('mfma16', 'mfma32')

def mfma16(d, a, b, c):
    cs = str(c) if isinstance(c, R) else str(c)
    return I(f"v_mfma_f32_16x16x32_bf16 {d}, {a}, {b}, {cs}", 'mfma16', rd=[a, b, c if isinstance(c, R) else None], wr=[d], srcc=c if isinstance(c, R) else None)
def mfma32(d, a, b, c):
    return I(f"v_mfma_f32_32x32x16_bf16 {d}, {a}, {b}, {c}", 'mfma32', rd=[a, b, c if isinstance(c, R) else None], wr=[d], srcc=c if isinstance(c, R) else None)
def valu(op, d, *src, extra_rd=(), extra_wr=(), kind='valu', suffix=''):
    ops = ", ".join(str(x) for x in (d,) + src)
    return I(f"{op} {ops}{suffix}", kind, rd=[x for x in src if isinstance(x, R)] + list(extra_rd), wr=[d] + list(extra_wr))
def trans(op, d, s):
    return valu(op, d, s, kind='trans')
def salu(op, d, *src, scc=True, extra_rd=()):
    ops = ", ".join(str(x) for x in (d,) + src)
    wr = [d if isinstance(d, R) else d]
    if scc: wr.append('scc')
    return I(f"{op} {ops}", 'salu', rd=[x for x in src if isinstance(x, R) or x in ('m0', 'scc', 'vcc', 'exec')] + list(extra_rd), wr=wr)
def ds_read(op, d, addr, off, tok=(), lead=6):
    return I(f"{op} {d}, {addr} offset:{off}", 'ds_rd', rd=[addr] + list(tok), wr=[d], lead=lead)
def ds_write(op, addr, s, off, tok=()):
    return I(f"{op} {addr}, {s} offset:{off}", 'ds_wr', rd=[addr, s], wr=list(tok))
def raw(text, kind='salu', rd=(), wr=(), cost=None):
    return I(text, kind, rd=rd, wr=wr, cost=cost)

def schedule(seq, gap_budget, verbose=False):
    n = len(seq)
    for i, x in enumerate(seq): x.idx = i
    preds = [set() for _ in range(n)]
    succs = [set() for _ in range(n)]
    last_w = {}; readers = {}
    for i, x in enumerate(seq):
        for r in x.rd:
            if r in last_w: preds[i].add(last_w[r])
        for r in x.wr:
            if r in last_w: preds[i].add(last_w[r])
            for j in readers.get(r, ()):
                if j != i: preds[i].add(j)
        for r in x.rd: readers.setdefault(r, []).append(i)
        for r in x.wr:
            last_w[r] = i; readers[r] = []
    mf = [i for i in range(n) if seq[i].is_mfma()]
    for a, b in zip(mf, mf[1:]): preds[b].add(a)
    for kinds in (('dma', 'vmem', 'wait', 'barrier'),):
        ks = [i for i in range(n) if seq[i].kind in kinds]
        for a, b in zip(ks, ks[1:]): preds[b].add(a)
    for i in range(n):
        for p in preds[i]: succs[p].add(i)
    slot = {m: k for k, m in enumerate(mf)}
    nm = len(mf)
    dl = [None] * n
    for i in reversed(range(n)):
        if seq[i].is_mfma():
            dl[i] = slot[i]; continue
        d = nm
        for s_ in succs[i]:
            if seq[s_].is_mfma():
                raw_dep = bool(set(seq[i].wr) & set(seq[s_].rd))
                extra = seq[i].lead if raw_dep else 0
                if raw_dep and seq[i].kind in ('valu', 'trans', 'perm'): extra = max(extra, 1)
                d = min(d, dl[s_] - extra)
            else:
                d = min(d, dl[s_] - (seq[i].lead if set(seq[i].wr) & set(seq[s_].rd) else 0))
        dl[i] = d
    done = [False] * n
    emitted_gap = [None] * n
    out = []
    remaining = set(i for i in range(n) if not seq[i].is_mfma())
    def ready(i, g):
        if g < seq[i].nb: return False
        for p in preds[i]:
            if not done[p]: return False
            if seq[p].is_mfma() and (set(seq[p].wr) & (set(seq[i].rd) | set(seq[i].wr))):
                need = 3 if seq[p].kind == 'mfma16' else 2
                if g < slot[p] + need and g < nm: return False
        return True
    for g in range(nm + 1):
        budget = gap_budget if g < nm else 10 ** 9
        while True:
            cand = [i for i in remaining if ready(i, g)]
            if not cand: break
            cand.sort(key=lambda i: (dl[i], i))
            i = cand[0]
            forced = dl[i] <= g
            if not forced and seq[i].cost > budget:
                c2 = [j for j in cand if seq[j].cost <= budget]
                if not c2: break
                i = c2[0]
            out.append(seq[i]); done[i] = True; remaining.discard(i); emitted_gap[i] = g
            budget -= seq[i].cost
            if budget <= 0 and not any(dl[j] <= g for j in remaining if ready(j, g)): break
        if g < nm:
            m = mf[g]
            def force(i):
                for p in sorted(preds[i]):
                    if not done[p]:
                        force(p)
                        out.append(seq[p]); done[p] = True; remaining.discard(p); emitted_gap[p] = g
            force(m)
            out.append(seq[m]); done[m] = True
    assert not remaining, [seq[i].text for i in remaining]
    return out

def insert_lgkm_waits(trace):
    outstanding = []
    for blk in trace:
        for x in blk:
            if x.kind == 'wait' and 'lgkmcnt' in x.text:
                m = re.search(r'lgkmcnt\((\d+)\)', x.text)
                k = int(m.group(1))
                outstanding = outstanding[len(outstanding) - k:] if k < len(outstanding) else outstanding
                if k == 0: outstanding = []
                continue
            touched = set(x.rd) | set(x.wr)
            need = None
            for pos, dst in enumerate(outstanding):
                if dst & touched:
                    need = len(outstanding) - 1 - pos
            if need is not None:
                need = min(need, 15)
                x.wait_lgkm = need if x.wait_lgkm is None else min(x.wait_lgkm, need)
            if x.wait_lgkm is not None:
                k = x.wait_lgkm
                if k < len(outstanding): outstanding = outstanding[len(outstanding) - k:] if k else []
            if x.kind == 'ds_rd': outstanding.append(set(x.wr))
            elif x.kind == 'ds_wr': outstanding.append(set())

def expand(blk):
    out = []
    for x in blk:
        if x.wait_lgkm is not None:
            out.append((f"s_waitcnt lgkmcnt({x.wait_lgkm})", None))
        k = x.pre_nop
        while k > 0:
            t = min(k, 16)
            out.append((f"s_nop {t-1}", t)); k -= t
        out.append((x.text, x))
    return out

def fix_hazards(trace):
    changed = True
    while changed:
        changed = False
        hist = []
        for blk in trace:
            for x in blk:
                if x.kind in ('label', 'comment'): continue
                need = 0
                dist = x.pre_nop + (1 if x.wait_lgkm is not None else 0)
                rd, wr = set(x.rd), set(x.wr)
                isv = x.kind in ('valu', 'trans', 'perm')
                for p in reversed(hist[-24:]):
                    if p is not None:
                        pw = set(p.wr)
                        req = 0
                        if p.kind in ('valu', 'trans', 'perm'):
                            if x.is_mfma() and pw & rd: req = max(req, 2)
                            if p.kind == 'trans' and isv and x.kind != 'trans' and pw & rd: req = max(req, 1)
                            if p.kind == 'trans' and x.kind == 'trans' and pw & rd: req = max(req, 1)
                            if x.kind == 'perm' and pw & (rd | wr): req = max(req, 2)
                            if 'readfirstlane' in x.text or 'readlane' in x.text:
                                if pw & rd: req = max(req, 1)
                            sg = {r for r in pw if r[0] == 's' or r == 'vcc'}
                            if sg & rd:
                                if x.kind in ('vmem', 'dma'): req = max(req, 5)
                                elif isv: req = max(req, 2)
                                elif x.kind == 'salu': req = max(req, 1)
                            if 'exec' in pw: req = max(req, 5)
                        if p.is_mfma():
                            big = p.kind == 'mfma32'
                            if x.is_mfma():
                                c = set(x.srcc)
                                ab = rd - c
                                if pw & ab: req = max(req, 12 if big else 8)
                                if pw & c and not (set(p.wr) == c and p.kind == x.kind): req = max(req, 10 if big else 6)
                                if pw & wr and not (pw & c): req = max(req, 12 if big else 8)
                            else:
                                if pw & (rd | wr): req = max(req, 12 if big else 8)
                                if isv and set(p.srcc) & wr: req = max(req, 7 if big else 3)
                        if p.kind == 'salu' and 'm0' in pw and x.kind == 'dma': req = max(req, 1)
                        if p.kind == 'vmem' and ('store' in p.text) and ('x4' in p.text or 'x3' in p.text):
                            if set(p.rd) & wr and x.kind not in ('salu',): req = max(req, 2)
                        if req > dist: need = max(need, req - dist)
                        dist += 1 + p.pre_nop + (1 if p.wait_lgkm is not None else 0)
                    if dist > 24: break
                if need > 0:
                    x.pre_nop += need; changed = True
                hist.append(x)

def emit(blk, indent="    "):
    s = []
    for t, x in expand(blk):
        if isinstance(x, I) and x.kind == 'label': s.append(t)
        else: s.append(indent + t)
    return "\n".join(s) + "\n"

def stats(blk):
    from collections import Counter
    c = Counter(); cyc = 0
    for t, x in expand(blk):
        if isinstance(x, I): c[x.kind] += 1
        elif x is None: c['lgkmwait'] += 1
        else: c['nop'] += 1
    return dict(c)

_REG = re.compile(r'(?<![\w.])(-|\|)?(abs\()?([vas])(\d+|\[(\d+):(\d+)\])')
def _opregs(op):
    op = op.strip()
    out = []
    for m in re.finditer(r'(?<![\w.])([vas])(?:(\d+)(?![\w])|\[(\d+):(\d+)\])', op):
        f = m.group(1)
        if m.group(2) is not None: out.append(f"{f}{m.group(2)}")
        else: out += [f"{f}{i}" for i in range(int(m.group(3)), int(m.group(4)) + 1)]
    for sp in ('vcc', 'exec', 'm0', 'scc'):
        if re.search(rf'(?<![\w]){sp}(?![\w])', op) or re.search(rf'(?<![\w]){sp}_(lo|hi)(?![\w])', op): out.append(sp)
    return out
_TRANS = ('v_exp_f32', 'v_log_f32', 'v_rcp_f32', 'v_rsq_f32', 'v_sqrt_f32', 'v_sin_f32', 'v_cos_f32')
def A(text, rd=(), wr=(), lead=None, nb=0, tag=None, cost=None):
    t = text.strip()
    sp = t.split(None, 1)
    mn = sp[0]; rest = sp[1] if len(sp) > 1 else ''
    ops = []; depth = 0; cur = ''
    for ch in rest:
        if ch == '[': depth += 1
        if ch == ']': depth -= 1
        if ch == ',' and depth == 0: ops.append(cur); cur = ''
        else: cur += ch
    if cur.strip(): ops.append(cur)
    R_ = [_opregs(o) for o in ops]
    allr = [r for x in R_ for r in x]
    srcc = None; ld = 0
    if mn.startswith('v_mfma'):
        kind = 'mfma16' if '16x16x32' in mn else 'mfma32'
        w, r = R_[0], R_[1] + R_[2] + R_[3]
        x = I(t, kind, rd=r + list(rd), wr=w + list(wr)); x.srcc = R_[3]
    elif mn.startswith('buffer_') or mn.startswith('global_'):
        if ' lds' in (' ' + rest):
            x = I(t, 'dma', rd=allr + ['m0'] + list(rd), wr=list(wr))
        elif 'store' in mn or ('atomic' in mn and 'sc0' not in rest):
            x = I(t, 'vmem', rd=allr + list(rd), wr=list(wr))
        elif 'atomic' in mn:
            x = I(t, 'vmem', rd=allr + list(rd), wr=R_[0] + list(wr))
        else:
            x = I(t, 'vmem', rd=[r for y in R_[1:] for r in y] + list(rd), wr=R_[0] + list(wr))
    elif mn.startswith('ds_read'):
        x = I(t, 'ds_rd', rd=R_[1] + list(rd), wr=R_[0] + list(wr), lead=6)
    elif mn.startswith('ds_write'):
        x = I(t, 'ds_wr', rd=allr + list(rd), wr=list(wr))
    elif mn.startswith('v_permlane'):
        x = I(t, 'perm', rd=allr + list(rd), wr=allr + list(wr))
    elif mn.startswith('v_'):
        kind = 'trans' if mn in _TRANS else 'valu'
        w = list(R_[0]); r = [q for y in R_[1:] for q in y]
        if mn.startswith(('v_fmac', 'v_dot2c', 'v_writelane')): r += R_[0]
        if mn.startswith(('v_add_co', 'v_addc_co', 'v_sub_co')): w += R_[1]
        if mn.startswith('v_cmpx'): w.append('exec')
        x = I(t, kind, rd=r + list(rd), wr=w + list(wr))
    elif mn.startswith('s_waitcnt'):
        x = I(t, 'wait', rd=list(rd), wr=list(wr))
    elif mn == 's_barrier':
        x = I(t, 'barrier', rd=list(rd), wr=list(wr))
    elif mn.startswith('s_cbranch') or mn == 's_branch' or mn == 's_endpgm':
        x = I(t, 'branch', rd=['scc', 'vcc', 'exec'] + list(rd), wr=list(wr))
    elif mn.startswith('s_cmp'):
        x = I(t, 'salu', rd=allr + list(rd), wr=['scc'] + list(wr))
    elif mn in ('s_nop', 's_sleep', 's_setprio'):
        x = I(t, 'salu', rd=list(rd), wr=list(wr))
    elif mn.startswith('s_load') or mn.startswith('s_mem'):
        x = I(t, 'salu', rd=[q for y in R_[1:] for q in y] + list(rd), wr=R_[0] + list(wr))
    elif mn.startswith('s_'):
        w = list(R_[0]); r = [q for y in R_[1:] for q in y]
        if not mn.startswith(('s_mov', 's_cselect', 's_mul', 's_movk')): w.append('scc')
        if mn.startswith(('s_cselect', 's_addc', 's_subb')): r.append('scc')
        if 'saveexec' in mn: w.append('exec'); r.append('exec')
        x = I(t, 'salu', rd=r + list(rd), wr=w + list(wr))
    elif mn.endswith(':'):
        x = I(t, 'label')
    else:
        raise ValueError(text)
    if lead is not None: x.lead = lead
    x.nb = nb; x.tag = tag
    if cost is not None: x.cost = cost
    return x

def AL(text):
    out = []
    for ln in text.splitlines():
        ln = ln.split(';')[0].strip()
        if ln: out.append(A(ln))
    return out

def insert_vm_waits(trace, first_stage=0, dist=None):
    issued = []
    n = first_stage - 1
    res = {}
    for blk in trace:
        for x in blk:
            if x.kind in ('dma', 'vmem'):
                st = None
                if x.tag and x.tag[0] == 'st': st = x.tag[1]
                elif x.tag and x.tag[0] == 'rel': st = n + x.tag[1]
                issued.append(st)
            elif x.kind == 'wait' and x.tag and x.tag[0] == 'brwait':
                n += 1
                last = -1
                for i, st in enumerate(issued):
                    if st is not None and st <= n: last = i
                assert any(st == n for st in issued) or x.tag[1:] == ('empty',), f"stage {n} has no DMA before its BR"
                cnt = len(issued) - 1 - last
                res[id(x)] = min(res.get(id(x), 63), cnt)
                x.text = f"s_waitcnt vmcnt({min(res[id(x)], 63)})"
            elif x.kind == 'wait' and 'vmcnt' in x.text:
                m = re.search(r'vmcnt\((\d+)\)', x.text); k = int(m.group(1))
    return n
```

```python
import sys, math, struct
from asmlib import *

NAME = "concat_heads__gqa_block_cached__gqa_block_cached__near_ridge"
SLOT = 40960
WQW = 8704
XOFF = 34816
KB = 1088; VB = 1152
KT = 8704; HEAD = 17920
CT = 6

def f32bits(x): return struct.unpack('<I', struct.pack('<f', x))[0]
def lit(x): return x & 0xffffffff

SX, SK, SV, SWQ, SWO, SOUT, SWS, SWP = (R('s', 4 * i, 4) for i in range(1, 9))
sW, sB, sHG, sBR = R('s', 36), R('s', 37), R('s', 38), R('s', 39)
sCNT = R('s', 40)
sWqM0, sXM0, sKM0, sVM0 = R('s', 41), R('s', 42), R('s', 43), R('s', 44)
sWqOff, sWqOff2, sXOff, sKOff, sVOff = R('s', 45), R('s', 46), R('s', 47), R('s', 48), R('s', 49)
sC = R('s', 50, 2)
sOOff = R('s', 52)
sT = [R('s', 53 + i) for i in range(7)]

vT = [R('v', i) for i in range(4)]
vKr = R('v', 4); vVr = R('v', 5, 4); vKd = R('v', 9, 4); vVd = R('v', 13, 4)
vWd = R('v', 17, 4); vXd = R('v', 21, 2); vWr = R('v', 23, 4); vXr = R('v', 27)
VL = R('v', 28, 6)
vLane = R('v', 34)
VQ = R('v', 36, 96)
VS = [R('v', 132, 48), R('v', 180, 48)]
VNEG = R('v', 228, 24)
QA = [R('v', 132, 32), R('v', 188, 32)]
QB = [R('v', 164, 24), R('v', 220, 24)]
NKF, NVF = 4, 5
KF = [R('a', 192 + 4 * i, 4) for i in range(NKF)]
VF = [R('a', 208 + 4 * i, 4) for i in range(NVF)]
def ACC(dt, ct): return R('a', (dt * CT + ct) * 4, 4)
def Q(s, ct): return VQ[(s * CT + ct) * 4:(s * CT + ct) * 4 + 4]
def S(b, ct, kt): return VS[b][ct * 8 + kt * 4: ct * 8 + kt * 4 + 4]
def P(b, ct): return VS[b][ct * 8: ct * 8 + 4]
def NG(ct): return VNEG[ct * 4: ct * 4 + 4]

vWoD = R('v', 17, 9); vOd = R('v', 26); vWoR = R('v', 9); vOr = R('v', 10)
OA = [R('v', 132, 36), R('v', 192, 36)]
OB = [R('v', 168, 24), R('v', 228, 24)]
sWoM0, sOM0, sWoOff, sOdOff = sWqM0, sXM0, sWqOff, sXOff
OPSLOT = [76800, 119808, 0]
OPN0 = 70
def ACCO(i, ct): return R('a', (i * CT + ct) * 4, 4)
OWN = [(0, 14), (14, 27), (27, 41), (41, 54)]
PB_OFF = 0x6000000
PB_GRP = 4 * 4 * 4 * 14 * 1024

class Gen:
    def __init__(self, opt):
        self.opt = opt
        self.segs = []
        self.nstamp = 0
        self.aslot = {}
    def code(self, blk): self.segs.append(('code', blk))
    def sched(self, seq, budget=8): return schedule(seq, budget)
    def move_slot(self, key, regs, slot):
        cur = self.aslot[key]
        self.aslot[key] = slot
        if cur == slot: return []
        d = (slot - cur) * SLOT
        return [A(f"v_add_u32 {r}, {lit(d)}, {r}") for r in regs]
    def BR(self, rd, nb=0):
        w = A("s_waitcnt vmcnt(0)", rd=regs_of(rd), wr=['TOKB'], tag=('brwait',), nb=nb)
        b = A("s_barrier", rd=['TOKB'], wr=['TOKC'], nb=nb)
        return [w, b]
    def dma_qp(self, slot, tag, nm, tok=('TOKC',)):
        o = []
        base = slot * SLOT
        o.append(A(f"s_add_u32 m0, {sWqM0}, {base}", rd=tok))
        for j in range(4):
            o.append(A(f"buffer_load_dwordx4 {vWd[j]}, {SWQ}, {sWqOff} offen offset:{j*KB} lds", rd=tok, tag=tag))
        o.append(A(f"s_add_u32 {sWqOff2}, {sWqOff}, 131072"))
        o.append(A(f"s_add_u32 m0, {sWqM0}, {base + 4*KB}", rd=tok))
        for j in range(4):
            o.append(A(f"buffer_load_dwordx4 {vWd[j]}, {SWQ}, {sWqOff2} offen offset:{j*KB} lds", rd=tok, tag=tag))
        o.append(A(f"s_add_u32 {sWqOff}, {sWqOff}, 262144"))
        o.append(A(f"s_add_u32 m0, {sXM0}, {base}", rd=tok))
        o.append(A(f"buffer_load_dwordx4 {vXd[0]}, {SX}, {sXOff} offen lds", rd=tok, tag=tag))
        x = A(f"buffer_load_dwordx4 {vXd[1]}, {SX}, {sXOff} offen offset:1024 lds", rd=tok, tag=tag, cost=16)
        x.text = "s_mov_b32 exec_hi, 0\n    " + x.text + "\n    s_mov_b32 exec_hi, -1"
        o.append(x)
        o.append(A(f"s_add_u32 {sXOff}, {sXOff}, 64"))
        return self.spread(o, nm)
    def dma_at(self, slot, hasK, hasV, tag, nm, tok=('TOKC',), lastiter_noK=False):
        o = []
        base = slot * SLOT
        nt = " nt" if self.opt.get('nt', True) else ""
        if hasK:
            koff = sKOff
            if lastiter_noK:
                koff = sT[1]
                x = A(f"s_cselect_b32 {koff}, 0x40000000, {sKOff}", rd=[sCNT], wr=['scc'])
                x.text = f"s_cmp_eq_u32 {sCNT}, 1\n    " + x.text
                x.rd = [r for r in x.rd if r != 'scc']; x.cost = 8
                o.append(x)
            o.append(A(f"s_add_u32 m0, {sKM0}, {base}", rd=tok))
            for j in range(4):
                o.append(A(f"buffer_load_dwordx4 {vKd[j]}, {SK}, {koff} offen offset:{j*KB}{nt} lds", rd=tok, tag=tag))
            o.append(A(f"s_add_u32 {sKOff}, {sKOff}, 8192"))
        if hasV:
            o.append(A(f"s_add_u32 m0, {sVM0}, {base}", rd=tok))
            for j in range(4):
                o.append(A(f"buffer_load_dwordx4 {vVd[j]}, {SV}, {sVOff} offen offset:{j*VB}{nt} lds", rd=tok, tag=tag))
            o.append(A(f"s_add_u32 {sVOff}, {sVOff}, 8192"))
        return self.spread(o, nm)
    def spread(self, o, nm, first=1):
        d = [x for x in o if x.kind == 'dma']
        if nm:
            for i, x in enumerate(d): x.nb = first + i * (nm - first) // len(d)
            nxt = None
            for x in reversed(o):
                if x.kind == 'dma': nxt = x.nb
                elif nxt is not None: x.nb = max(0, nxt - 1)
        return o
    def dma_stage(self, n, tag, nm, tok=('TOKC',), lastiter_noK=False):
        kind = self.stage_kind(n)
        if kind is None: return []
        slot = n % 4
        if kind[0] == 'qp':
            pre = []
            if kind[2] == 0:
                r = kind[1]
                pre = [A(f"s_lshl_b32 {sWqOff}, {sW}, 8"), A(f"s_add_u32 {sWqOff}, {sWqOff}, {r*1024}"), A(f"s_mov_b32 {sXOff}, 0")]
            return pre + self.dma_qp(slot, tag, nm, tok)
        if kind[0] == 'at':
            r, a = kind[1], kind[2]
            pre = []
            if a == -1:
                pre = [A(f"s_lshr_b32 {sKOff}, {sW}, 1"), A(f"s_lshl_b32 {sKOff}, {sKOff}, 17"),
                       A(f"s_and_b32 {sVOff}, {sW}, 1"), A(f"s_lshl_b32 {sVOff}, {sVOff}, 12"),
                       A(f"s_add_u32 {sKOff}, {sKOff}, {sVOff}"), A(f"s_add_u32 {sKOff}, {sKOff}, {r*262144}"),
                       A(f"s_mov_b32 {sVOff}, {sKOff}")]
            return pre + self.dma_at(slot, a <= 14, a >= 0, tag, nm, tok, lastiter_noK)
        if kind[0] == 'op':
            u = kind[1]
            pre = []
            if u == 0:
                pre = AL(f'''
                s_mul_i32 {sWoM0}, {sW}, 9216
                s_mul_i32 {sOM0}, {sW}, 1536
                s_mov_b32 {sOdOff}, {sOM0}
                s_add_u32 {sOM0}, {sOM0}, 36864
                s_mul_i32 {sWoOff}, {sW}, 288
                ''')
            base = OPSLOT[u % 3]
            o = []
            for j in range(9):
                if j % 4 == 0: o.append(A(f"s_add_u32 m0, {sWoM0}, {base + (j // 4) * 4096}", rd=tok))
                o.append(A(f"buffer_load_dwordx4 {vWoD[j]}, {SWO}, {sWoOff} offen offset:{(j % 4) * 1024} lds", rd=tok, tag=tag))
            o.append(A(f"s_add_u32 {sWoOff}, {sWoOff}, 36864"))
            o.append(A(f"s_add_u32 m0, {sOM0}, {base}", rd=tok))
            o.append(A(f"buffer_load_dwordx4 {vOd}, {SWS}, {sOdOff} offen lds", rd=tok, tag=tag))
            x = A(f"buffer_load_dwordx4 {vOd}, {SWS}, {sOdOff} offen offset:1024 lds", rd=tok, tag=tag, cost=16)
            x.text = "s_mov_b32 exec_hi, 0\n    " + x.text + "\n    s_mov_b32 exec_hi, -1"
            o.append(x)
            o.append(A(f"s_add_u32 {sOdOff}, {sOdOff}, 6144"))
            return pre + self.spread(o, nm)
        raise ValueError(kind)
    def stage_kind(self, n):
        r, m = divmod(n, 35)
        if r >= 2:
            if self.opt.get('fused', 1) and n < OPN0 + 32: return ('op', n - OPN0)
            return None
        if m < 18: return ('qp', r, m)
        return ('at', r, m - 19)

    def qp_reads(self, n, st, tok=('TOKC',)):
        o = self.move_slot('qp', [vWr[i] for i in range(4)] + [vXr], n % 4)
        for ct in range(CT):
            o.append(A(f"ds_read_b128 {QB[st][4*ct:4*ct+4]}, {vXr} offset:{ct*1024}", rd=tok))
        for dt in range(8):
            a, b = divmod(dt, 4)
            f = QA[st][4 * dt:4 * dt + 4]
            o.append(A(f"ds_read_b64_tr_b16 {f[0:2]}, {vWr[b]} offset:{a*128}", rd=tok))
            o.append(A(f"ds_read_b64_tr_b16 {f[2:4]}, {vWr[b]} offset:{a*128 + KB}", rd=tok))
        return o
    def qp_body(self, r, t):
        n = r * 35 + t
        st = t % 2
        seq = self.BR([QA[st], QB[st]])
        seq += self.dma_stage(n + 4, ('rel', 3), 44)
        if t < 17: seq += self.qp_reads(n + 1, 1 - st)
        else: seq += self.k_prereads(n + 1)
        for dt in range(8):
            for ct in range(CT):
                seq.append(mfma16(ACC(dt, ct), QA[st][4 * dt:4 * dt + 4], QB[st][4 * ct:4 * ct + 4], ACC(dt, ct) if t else 0))
        return seq
    def q_convert(self):
        seq = []
        tmps = [R('v', 180, 8), R('v', 244, 8), R('v', 188, 8), R('v', 196, 8)]
        k = 0
        for s in range(4):
            for ct in range(CT):
                t8 = tmps[k % (2 if k < 4 else 4)]; k += 1
                q = Q(s, ct)
                for h in range(2):
                    for j in range(4):
                        seq.append(A(f"v_accvgpr_read_b32 {t8[4*h+j]}, {ACC(2*s+h, ct)[j]}"))
                for i in range(4):
                    seq.append(A(f"v_pk_mul_f32 {t8[2*i:2*i+2]}, {t8[2*i:2*i+2]}, {sC}"))
                for i in range(4):
                    seq.append(A(f"v_cvt_pk_bf16_f32 {q[i]}, {t8[2*i]}, {t8[2*i+1]}"))
                for i in range(2):
                    seq.append(A(f"v_permlane32_swap_b32 {q[i]}, {q[2+i]}"))
                for i in range(2):
                    seq.append(A(f"v_permlane16_swap_b32 {q[i]}, {q[2+i]}"))
        return seq

    NPRE = 2
    def kread(self, i, tok=()):
        kt, s = divmod(i, 4)
        return A(f"ds_read_b128 {KF[i % NKF]}, {vKr} offset:{kt*4*KB + s*64}", rd=tok, lead=self.opt.get('lead', 6))
    def k_prereads(self, n, nb=0):
        o = self.move_slot('k', [vKr], n % 4)
        o += [self.kread(i, ('TOKC',)) for i in range(self.NPRE)]
        for x in o: x.nb = nb
        return o
    def qk(self, nbuf, first):
        seq = []
        for i in range(8):
            if i >= self.NPRE: seq.append(self.kread(i))
            kt, s = divmod(i, 4)
            for ct in range(CT):
                c = S(nbuf, ct, kt) if s else (0 if first else NG(ct))
                seq.append(mfma16(S(nbuf, ct, kt), KF[i % NKF], Q(s, ct), c))
        return seq
    def softmax(self, b, ct):
        base = VS[b][ct * 8:ct * 8 + 8]
        o = [A(f"v_exp_f32 {base[i]}, {base[i]}") for i in range(8)]
        o += [A(f"v_add_f32 {VL[ct]}, {VL[ct]}, {base[i]}") for i in range(8)]
        o += [A(f"v_cvt_pk_bf16_f32 {base[i]}, {base[2*i]}, {base[2*i+1]}") for i in range(4)]
        return o
    def xlane(self, op, x, t):
        return [A(f"v_mov_b32 {t}, {x}"), A(f"v_permlane32_swap_b32 {t}, {x}"), A(f"{op} {x}, {x}, {t}"),
                A(f"v_mov_b32 {t}, {x}"), A(f"v_permlane16_swap_b32 {t}, {x}"), A(f"{op} {x}, {x}, {t}")]
    def at_pro(self, r):
        n = r * 35 + 18
        sp = self.opt.get('split', 3)
        seq = self.qk(0, True)
        seq += self.BR(KF, nb=48 - 7)
        seq += self.k_prereads(n + 1, nb=48 - 7)
        for ct in range(CT):
            base = VS[0][ct * 8:ct * 8 + 8]
            m = NG(ct)[0]; t = NG(ct)[1]
            seq.append(A(f"v_max3_f32 {m}, {base[0]}, {base[1]}, {base[2]}"))
            seq.append(A(f"v_max3_f32 {t}, {base[3]}, {base[4]}, {base[5]}"))
            seq.append(A(f"v_max3_f32 {m}, {m}, {base[6]}, {base[7]}"))
            seq.append(A(f"v_max_f32 {m}, {m}, {t}"))
            seq += self.xlane("v_max_f32", m, t)
            seq.append(A(f"v_sub_f32 {m}, 0, {m}"))
            for j in range(1, 4): seq.append(A(f"v_mov_b32 {NG(ct)[j]}, {m}"))
            for i in range(8): seq.append(A(f"v_add_f32 {base[i]}, {base[i]}, {m}"))
            seq.append(A(f"v_mov_b32 {VL[ct]}, 0"))
        for ct in range(sp): seq += self.softmax(0, ct)
        return seq
    def at_body(self, r, a, inloop=False):
        n = r * 35 + 19 + a
        p = a % 2; nbuf = 1 - p
        sp = self.opt.get('split', 3)
        lead = self.opt.get('lead', 6); barpos = self.opt.get('barpos', 7)
        nm = 96 if a < 15 else 48
        seq = []
        seq += self.move_slot('v', [vVr[i] for i in range(4)], n % 4)
        if a < 15: seq += self.qk(nbuf, False)
        for ct in range(sp, CT): seq += self.softmax(p, ct)
        seq += self.dma_stage(n + 3, ('rel', 3), nm - 14, tok=(), lastiter_noK=(inloop and a == 4))
        pv = []
        for dt in range(8):
            vf = VF[dt % NVF]; aa, b = divmod(dt, 4)
            rds = [A(f"ds_read_b64_tr_b16 {vf[0:2]}, {vVr[b]} offset:{aa*128}", lead=lead),
                   A(f"ds_read_b64_tr_b16 {vf[2:4]}, {vVr[b]} offset:{aa*128 + 4*VB}", lead=lead)]
            ms = [mfma16(ACC(dt, ct), vf, P(p, ct), ACC(dt, ct) if a else 0) for ct in range(CT)]
            pv.append((rds, ms))
        NL = 2
        for i in range(8 - NL): seq += pv[i][0] + pv[i][1]
        for i in range(8 - NL, 8): seq += pv[i][0]
        last = self.stage_kind(n + 1) is None
        if not last:
            seq += self.BR(VF + KF, nb=nm - barpos)
            if a < 14: seq += self.k_prereads(n + 1, nb=nm - barpos)
        for i in range(8 - NL, 8): seq += pv[i][1]
        if a < 15:
            for ct in range(sp): seq += self.softmax(nbuf, ct)
        return seq
    def at_epi(self, r):
        seq = []
        inv = R('v', 244, 12)
        for ct in range(CT):
            seq += self.xlane("v_add_f32", VL[ct], inv[2 * ct + 1])
            seq.append(A(f"v_rcp_f32 {inv[2*ct]}, {VL[ct]}"))
            seq.append(A(f"v_mov_b32 {inv[2*ct+1]}, {inv[2*ct]}"))
        seq.append(A(f"s_mul_i32 {sOOff}, {sW}, 24576"))
        seq.append(A(f"s_add_u32 {sOOff}, {sOOff}, {r*4*24576}"))
        seq.append(A(f"v_lshlrev_b32 {vT[1]}, 4, {vLane}"))
        tmps = [R('v', 228, 8), R('v', 236, 8)]
        k = 0
        for s in range(4):
            for ct in range(CT):
                t8 = tmps[k % 2]; k += 1
                for h in range(2):
                    for j in range(4):
                        seq.append(A(f"v_accvgpr_read_b32 {t8[4*h+j]}, {ACC(2*s+h, ct)[j]}"))
                for i in range(4):
                    seq.append(A(f"v_pk_mul_f32 {t8[2*i:2*i+2]}, {t8[2*i:2*i+2]}, {inv[2*ct:2*ct+2]}"))
                for i in range(4):
                    seq.append(A(f"v_cvt_pk_bf16_f32 {t8[i]}, {t8[2*i]}, {t8[2*i+1]}"))
                off = (s * CT + ct) * 1024
                if off % 4096 == 0 and off: seq.append(A(f"s_add_u32 {sOOff}, {sOOff}, 4096"))
                seq.append(A(f"buffer_store_dwordx4 {t8[0:4]}, {vT[1]}, {SWS}, {sOOff} offen offset:{off % 4096}"))
        return seq

    def op_setup_dma(self):
        t1, t2 = vT[1], vT[2]
        o = []
        for j in range(9):
            o += AL(f'''
            v_add_u32 {t1}, {64*j}, {vLane}
            v_mul_u32_u24 {t2}, 3641, {t1}
            v_lshrrev_b32 {t2}, 16, {t2}
            v_mul_u32_u24 {vWoD[j]}, {1152 - 288}, {t2}
            v_lshl_add_u32 {vWoD[j]}, {t1}, 4, {vWoD[j]}
            ''')
            if j % 4: o.append(A(f"v_subrev_u32 {vWoD[j]}, {(j % 4) * 1024}, {vWoD[j]}"))
        o.append(A(f"v_lshlrev_b32 {vOd}, 4, {vLane}"))
        return o
    def op_setup_rd(self):
        t1, t2 = vT[2], vT[3]
        self.opbase = 0
        return AL(f'''
        v_lshrrev_b32 {t1}, 2, {vLane}
        v_mul_u32_u24 {t1}, 288, {t1}
        v_and_b32 {t2}, 3, {vLane}
        v_lshl_add_u32 {t1}, {t2}, 3, {t1}
        s_mul_i32 {sT[2]}, {sW}, 9216
        v_add_u32 {vWoR}, {sT[2]}, {t1}
        v_lshlrev_b32 {vOr}, 4, {vLane}
        v_add_u32 {vOr}, 36864, {vOr}
        ''')
    def op_reads(self, u, st, tok=('TOKC',)):
        base = OPSLOT[u % 3]
        d = base - self.opbase; self.opbase = base
        o = [A(f"v_add_u32 {r}, {lit(d)}, {r}") for r in (vWoR, vOr)] if d else []
        for ct in range(CT):
            o.append(A(f"ds_read_b128 {OB[st][4*ct:4*ct+4]}, {vOr} offset:{ct*1024}", rd=tok))
        for i in range(9):
            f = OA[st][4 * i:4 * i + 4]
            o.append(A(f"ds_read_b64_tr_b16 {f[0:2]}, {vWoR} offset:{i*32}", rd=tok))
            o.append(A(f"ds_read_b64_tr_b16 {f[2:4]}, {vWoR} offset:{i*32 + 4608}", rd=tok))
        return o
    def op_body(self, u):
        n = OPN0 + u; st = u % 2
        seq = []
        if u < 31:
            seq += self.BR([OA[st], OB[st]])
            seq += self.dma_stage(n + 3, ('rel', 2), 50)
            seq += self.op_reads(u + 1, 1 - st)
        for i in range(9):
            for ct in range(CT):
                seq.append(mfma16(ACCO(i, ct), OA[st][4 * i:4 * i + 4], OB[st][4 * ct:4 * ct + 4], ACCO(i, ct) if u else 0))
        return seq
    def touch_op(self):
        if not self.opt.get('touch', 1): return []
        t1, d = vT[1], R('v', 35)
        return AL(f'''
        s_lshl_b32 {sT[2]}, {sB}, 2
        s_add_u32 {sT[2]}, {sT[2]}, {sW}
        s_mul_i32 {sT[2]}, {sT[2]}, {72*128}
        v_lshlrev_b32 {t1}, 7, {vLane}
        buffer_load_dword {d}, {t1}, {SWO}, {sT[2]} offen
        buffer_load_dword {d}, {t1}, {SWO}, {sT[2]} offen offset:1024
        ''')
    def exch_send(self, h):
        seq = [A(f"s_mul_i32 {sT[2]}, {sW}, 14336")]
        for o in range(4):
            if o == h: continue
            lo, hi = OWN[o]
            for slot, tt in enumerate(range(lo, hi)):
                ct, i = divmod(tt, 9)
                if slot % 4 == 0:
                    seq.append(A(f"s_add_u32 {sT[3 + (slot // 4) % 2]}, {sT[2]}, {(o * 4 + h) * 4 * 14336 + (slot // 4) * 4096}"))
                seq.append(A(f"buffer_store_dwordx4 {ACCO(i, ct)}, {vOd}, {SWP}, {sT[3 + (slot // 4) % 2]} offen offset:{(slot % 4) * 1024} sc1"))
        return seq
    def exch_recv(self, h):
        lo, hi = OWN[h]
        nt_ = hi - lo
        seq = [A(f"s_mul_i32 {sT[2]}, {sW}, 14336")]
        buf = lambda k, slot: R('v', 40 + (k * 14 + slot) * 4, 4)
        srcs = [s_ for s_ in range(4) if s_ != h]
        for slot in range(nt_):
            for k, s_ in enumerate(srcs):
                if slot % 4 == 0:
                    seq.append(A(f"s_add_u32 {sT[3 + k]}, {sT[2]}, {(h * 4 + s_) * 4 * 14336 + (slot // 4) * 4096}"))
                seq.append(A(f"buffer_load_dwordx4 {buf(k, slot)}, {vOd}, {SWP}, {sT[3 + k]} offen offset:{(slot % 4) * 1024} sc1"))
        ta, tb = vT[1], vT[2]
        seq += AL(f'''
        v_and_b32 {ta}, 15, {vLane}
        v_mul_u32_u24 {ta}, 2304, {ta}
        v_lshrrev_b32 {tb}, 4, {vLane}
        v_lshl_add_u32 {ta}, {tb}, 3, {ta}
        s_mul_i32 {sT[2]}, {sW}, 288
        ''')
        tmp = [R('v', 212 + 4 * k, 4) for k in range(8)]
        for slot, tt in enumerate(range(lo, hi)):
            ct, i = divmod(tt, 9)
            x = tmp[slot % 8]
            seq.append(A(f"s_waitcnt vmcnt({3 * (nt_ - 1 - slot) + slot})"))
            for j in range(4): seq.append(A(f"v_accvgpr_read_b32 {x[j]}, {ACCO(i, ct)[j]}"))
            for k in range(3):
                b = buf(k, slot)
                for j in range(2): seq.append(A(f"v_pk_add_f32 {x[2*j:2*j+2]}, {x[2*j:2*j+2]}, {b[2*j:2*j+2]}"))
            seq.append(A(f"v_cvt_pk_bf16_f32 {x[0]}, {x[0]}, {x[1]}"))
            seq.append(A(f"v_cvt_pk_bf16_f32 {x[1]}, {x[2]}, {x[3]}"))
            seq.append(A(f"s_add_u32 {sT[3]}, {sT[2]}, {ct * 16 * 2304}"))
            seq.append(A(f"buffer_store_dwordx2 {x[0:2]}, {ta}, {SOUT}, {sT[3]} offen offset:{i * 32}"))
        return seq
    def exch_sync(self, h):
        return AL(f'''
        s_waitcnt vmcnt(0)
        s_barrier
        s_cmp_lg_u32 {sW}, 0
        s_cbranch_scc1 L_sync_done{h}
        s_lshl_b32 {sT[2]}, {sB}, 1
        s_add_u32 {sT[2]}, {sT[2]}, {sBR}
        s_lshl_b32 {sT[2]}, {sT[2]}, 2
        v_mov_b32 {vT[1]}, {sT[2]}
        v_mov_b32 {vT[2]}, 1
        s_mov_b64 s[86:87], exec
        s_mov_b64 exec, 1
        global_atomic_add {vT[1]}, {vT[2]}, s[74:75] sc1
        L_poll{h}:
        global_load_dword {vT[3]}, {vT[1]}, s[74:75] sc1
        s_waitcnt vmcnt(0)
        v_readfirstlane_b32 {sT[3]}, {vT[3]}
        s_cmp_ge_u32 {sT[3]}, 4
        s_cbranch_scc1 L_poll_done{h}
        s_sleep 2
        s_branch L_poll{h}
        L_poll_done{h}:
        s_mov_b64 exec, s[86:87]
        L_sync_done{h}:
        s_barrier
        ''')

    def prologue(self):
        c = math.log2(math.e) / math.sqrt(128.0)
        L = vLane
        t1, t2, t3 = vT[1], vT[2], vT[3]
        txt = f"""
        s_cmp_ge_u32 s2, 256
        s_cbranch_scc1 L_end
        s_and_b32 s3, s2, 7
        s_lshr_b32 {sBR}, s3, 2
        s_and_b32 {sHG}, s3, 3
        s_lshr_b32 {sB}, s2, 3
        s_mul_i32 s3, {sBR}, 40
        s_add_u32 s60, s0, s3
        s_addc_u32 s61, s1, 0
        s_load_dwordx2 s[62:63], s[60:61], 0
        s_load_dwordx2 s[64:65], s[60:61], 8
        s_load_dwordx2 s[66:67], s[60:61], 16
        s_load_dwordx2 s[68:69], s[60:61], 24
        s_load_dwordx2 s[70:71], s[60:61], 32
        s_load_dwordx2 s[72:73], s[0:1], 80
        s_load_dwordx2 s[74:75], s[0:1], 88
        s_load_dwordx2 s[76:77], s[0:1], 96
        v_lshrrev_b32 {t1}, 6, v0
        v_and_b32 {L}, 63, v0
        v_readfirstlane_b32 {sW}, {t1}
        s_mov_b32 {sC[0]}, {f32bits(c)}
        s_mov_b32 {sC[1]}, {f32bits(c)}
        s_waitcnt lgkmcnt(0)
        ; X: base + b*110592
        s_mul_i32 s3, {sB}, 110592
        s_add_u32 {SX[0]}, s62, s3
        s_addc_u32 {SX[1]}, s63, 0
        s_and_b32 {SX[1]}, {SX[1]}, 0xffff
        s_mov_b32 {SX[2]}, 110592
        s_mov_b32 {SX[3]}, 0x20000
        s_lshl_b32 s3, {sB}, 2
        s_add_u32 s3, s3, {sHG}
        s_lshl_b32 s3, s3, 19
        s_add_u32 {SK[0]}, s64, s3
        s_addc_u32 {SK[1]}, s65, 0
        s_sub_u32 {SK[0]}, {SK[0]}, 256
        s_subb_u32 {SK[1]}, {SK[1]}, 0
        s_and_b32 {SK[1]}, {SK[1]}, 0xffff
        s_mov_b32 {SK[2]}, {524288 + 256}
        s_mov_b32 {SK[3]}, 0x20000
        s_add_u32 {SV[0]}, s66, s3
        s_addc_u32 {SV[1]}, s67, 0
        s_sub_u32 {SV[0]}, {SV[0]}, 512
        s_subb_u32 {SV[1]}, {SV[1]}, 0
        s_and_b32 {SV[1]}, {SV[1]}, 0xffff
        s_mov_b32 {SV[2]}, {524288 + 512}
        s_mov_b32 {SV[3]}, 0x20000
        s_lshl_b32 s3, {sHG}, 11
        s_add_u32 {SWQ[0]}, s68, s3
        s_addc_u32 {SWQ[1]}, s69, 0
        s_and_b32 {SWQ[1]}, {SWQ[1]}, 0xffff
        s_sub_u32 {SWQ[2]}, 4718592, s3
        s_mov_b32 {SWQ[3]}, 0x20000
        s_mul_i32 s3, s2, 196608
        s_add_u32 {SWS[0]}, s76, s3
        s_addc_u32 {SWS[1]}, s77, 0
        s_and_b32 {SWS[1]}, {SWS[1]}, 0xffff
        s_mov_b32 {SWS[2]}, 196608
        s_mov_b32 {SWS[3]}, 0x20000
        s_mul_i32 s3, {sHG}, 1179648
        s_add_u32 {SWO[0]}, s70, s3
        s_addc_u32 {SWO[1]}, s71, 0
        s_and_b32 {SWO[1]}, {SWO[1]}, 0xffff
        s_mov_b32 {SWO[2]}, 1179648
        s_mov_b32 {SWO[3]}, 0x20000
        s_mul_i32 s3, {sB}, 221184
        s_mul_i32 {sT[0]}, {sBR}, 1152
        s_add_u32 s3, s3, {sT[0]}
        s_add_u32 {SOUT[0]}, s72, s3
        s_addc_u32 {SOUT[1]}, s73, 0
        s_and_b32 {SOUT[1]}, {SOUT[1]}, 0xffff
        s_sub_u32 {SOUT[2]}, 221184, {sT[0]}
        s_mov_b32 {SOUT[3]}, 0x20000
        s_lshl_b32 s3, {sB}, 1
        s_add_u32 s3, s3, {sBR}
        s_mul_i32 s3, s3, {PB_GRP}
        s_add_u32 s3, s3, {PB_OFF}
        s_add_u32 {SWP[0]}, s76, s3
        s_addc_u32 {SWP[1]}, s77, 0
        s_and_b32 {SWP[1]}, {SWP[1]}, 0xffff
        s_mov_b32 {SWP[2]}, {PB_GRP}
        s_mov_b32 {SWP[3]}, 0x20000
        s_mul_i32 {sWqM0}, {sW}, {WQW}
        s_mul_i32 {sXM0}, {sW}, 1536
        s_add_u32 {sXM0}, {sXM0}, {XOFF}
        s_lshr_b32 s3, {sW}, 1
        s_mul_i32 {sT[0]}, s3, {HEAD}
        s_and_b32 s3, {sW}, 1
        s_mul_i32 {sKM0}, s3, {4*KB}
        s_add_u32 {sKM0}, {sKM0}, {sT[0]}
        s_mul_i32 {sVM0}, s3, {4*VB}
        s_add_u32 {sVM0}, {sVM0}, {sT[0]}
        s_add_u32 {sVM0}, {sVM0}, {KT}
        ; ---- DMA lane patterns: rr = lane>>4, p = lane&15
        v_lshrrev_b32 {t1}, 4, {L}
        v_and_b32 {t2}, 15, {L}
        v_lshlrev_b32 {t3}, 1, {t1}
        v_xor_b32 {t3}, {t3}, {t2}
        v_lshlrev_b32 {t3}, 4, {t3}                       ; (p ^ 2rr)*16
        v_lshl_add_u32 {vWd[0]}, {t1}, 13, {t3}
        v_add_u32 {vWd[1]}, {32768 - KB}, {vWd[0]}
        v_add_u32 {vWd[2]}, {2*(32768 - KB)}, {vWd[0]}
        v_add_u32 {vWd[3]}, {3*(32768 - KB)}, {vWd[0]}
        v_lshl_add_u32 {vVd[3]}, {t1}, 8, {t3}
        v_add_u32 {vVd[0]}, 512, {vVd[3]}
        v_add_u32 {vVd[1]}, 384, {vVd[3]}
        v_add_u32 {vVd[2]}, 256, {vVd[3]}
        v_add_u32 {vVd[3]}, 128, {vVd[3]}
        v_xor_b32 {t3}, {t1}, {t2}
        v_lshlrev_b32 {t3}, 4, {t3}                       ; (p ^ rr)*16
        v_lshl_add_u32 {vKd[3]}, {t1}, 8, {t3}
        v_add_u32 {vKd[0]}, 256, {vKd[3]}
        v_add_u32 {vKd[1]}, 192, {vKd[3]}
        v_add_u32 {vKd[2]}, 128, {vKd[3]}
        v_add_u32 {vKd[3]}, 64, {vKd[3]}
        s_mul_i32 s3, {sW}, 96
        """
        for h in range(2):
            txt += f"""
        v_add_u32 {t1}, s3, {L}
        v_add_u32 {t1}, {64*h}, {t1}                      ; P
        v_lshrrev_b32 {t2}, 4, {t1}
        v_sub_u32 {t2}, 0, {t2}
        v_xor_b32 {t2}, {t2}, {t1}
        v_and_b32 {t2}, 3, {t2}                           ; g = pp ^ ((-(q>>2))&3)
        v_lshrrev_b32 {t1}, 2, {t1}                       ; row
        v_mul_u32_u24 {t1}, 1152, {t1}
        v_lshl_add_u32 {vXd[h]}, {t2}, 4, {t1}
        """
        txt += f"""
        v_subrev_u32 {vXd[1]}, 1024, {vXd[1]}
        ; ---- LDS read patterns. g/kg = lane>>4, r = (lane>>2)&3, c = lane&3
        v_lshrrev_b32 {t1}, 4, {L}                        ; g
        v_bfe_u32 {t2}, {L}, 2, 2                         ; r
        v_and_b32 {t3}, 3, {L}
        v_lshlrev_b32 {t3}, 3, {t3}                       ; 8c
        v_lshl_add_u32 {t3}, {t2}, 8, {t3}                ; r*256 + 8c
        v_mul_u32_u24 {vXr}, {2*KB}, {t1}
        v_add_u32 {vXr}, {vXr}, {t3}
        v_add_u32 {vXr}, {sWqM0}, {vXr}                   ; w*8704 + kg*2176 + r*256 + 8c
        v_mul_u32_u24 {vKr}, {VB}, {t1}
        v_add_u32 {vKr}, {vKr}, {t3}
        s_add_u32 s3, {sT[0]}, {KT}
        v_add_u32 {vKr}, s3, {vKr}                        ; head*17920 + 8704 + g*1152 + r*256 + 8c
        """
        for b in range(4):
            txt += f"""
        v_xor_b32 {t3}, {b}, {t2}
        v_lshl_add_u32 {vWr[b]}, {t3}, 5, {vXr}
        v_lshl_add_u32 {vVr[b]}, {t3}, 5, {vKr}
        """
        txt += f"""
        v_and_b32 {t2}, 15, {L}
        v_lshrrev_b32 {t3}, 2, {t2}
        v_sub_u32 {t3}, 0, {t3}
        v_xor_b32 {t3}, {t3}, {t1}
        v_and_b32 {t3}, 3, {t3}
        v_lshlrev_b32 {t3}, 4, {t3}
        v_lshl_add_u32 {vXr}, {t2}, 6, {t3}
        v_add_u32 {vXr}, {XOFF}, {vXr}
        v_lshrrev_b32 {t3}, 2, {t2}
        v_mul_u32_u24 {vKr}, {KB}, {t3}
        v_and_b32 {t2}, 3, {t2}
        v_lshl_add_u32 {vKr}, {t2}, 8, {vKr}
        v_xor_b32 {t2}, {t2}, {t1}
        v_lshl_add_u32 {vKr}, {t2}, 4, {vKr}
        v_add_u32 {vKr}, {sT[0]}, {vKr}
        """
        self.aslot = {'qp': 0, 'k': 0, 'v': 0}
        return AL(txt)

    def touch_qp(self, r):
        if not self.opt.get('touch', 1): return []
        t1, t2, d = vT[1], vT[2], R('v', 35)
        o = AL(f'''
        s_lshl_b32 {sT[2]}, {sB}, 2
        s_add_u32 {sT[2]}, {sT[2]}, {sW}
        s_mul_i32 {sT[2]}, {sT[2]}, 36
        v_add_u32 {t1}, {sT[2]}, {vLane}
        v_lshrrev_b32 {t2}, 3, {t1}
        v_and_b32 {t1}, 7, {t1}
        v_lshlrev_b32 {t1}, 7, {t1}
        v_lshl_add_u32 {t1}, {t2}, 13, {t1}
        buffer_load_dword {d}, {t1}, {SWQ}, 0 offen offset:{r*1024}
        s_mul_i32 {sT[2]}, {sW}, {216*128}
        v_lshlrev_b32 {t2}, 7, {vLane}
        buffer_load_dword {d}, {t2}, {SX}, {sT[2]} offen
        s_add_u32 {sT[3]}, {sT[2]}, 8192
        buffer_load_dword {d}, {t2}, {SX}, {sT[3]} offen
        s_add_u32 {sT[2]}, {sT[2]}, 16384
        buffer_load_dword {d}, {t2}, {SX}, {sT[2]} offen
        s_add_u32 {sT[3]}, {sT[3]}, 16384
        buffer_load_dword {d}, {t2}, {SX}, {sT[3]} offen
        ''')
        return o
    def stamp(self, idx=None, lvl=1):
        if self.opt.get('stamp', 0) < lvl: return
        idx = self.nstamp; self.nstamp += 1
        self.code(AL(f'''
        s_memtime s[78:79]
        s_memrealtime s[80:81]
        s_waitcnt lgkmcnt(0)
        v_mov_b32 {vT[2]}, s78
        v_mov_b32 {vT[3]}, s80
        s_lshl_b32 s82, s2, 2
        s_add_u32 s82, s82, {sW}
        s_lshl_b32 s82, s82, 8
        v_mov_b32 {vT[1]}, s82
        s_add_u32 s84, s76, 0x4000000
        s_addc_u32 s85, s77, 0
        global_store_dwordx2 {vT[1]}, v[2:3], s[84:85] offset:{idx*8}
        '''))
    @staticmethod
    def shift(seq, off):
        for x in seq: x.nb += off
        return seq
    def loop(self, label, bodies, count):
        self.segs.append(('loop', label, bodies, count))

    def build_k1(self):
        fused = self.opt.get('fused', 1)
        pro = self.prologue()
        for n in range(3): pro += self.dma_stage(n, ('st', n), 0, tok=())
        pro += self.touch_qp(0)
        self.code(pro)
        self.stamp()
        for r in range(2):
            if r == 0:
                pre = self.BR([]) + self.dma_stage(3, ('rel', 3), 0) + self.qp_reads(0, 0)
                self.code(pre)
                self.stamp(lvl=2)
                self.code(self.sched(self.qp_body(r, 0)))
                self.stamp(lvl=2)
            self.loop(f"L_qp{r}", [self.sched(self.qp_body(r, t)) for t in range(1, 5)], 3)
            self.stamp(lvl=2)
            for t in range(13, 17): self.code(self.sched(self.qp_body(r, t)))
            self.stamp()
            self.code(self.sched(self.qp_body(r, 17) + self.q_convert() + self.shift(self.at_pro(r), 48)))
            self.stamp()
            b0 = self.at_body(r, 0)
            if r == 1 and fused: b0 += self.op_setup_dma()
            self.code(self.sched(b0))
            self.loop(f"L_at{r}", [self.sched(self.at_body(r, a, True)) for a in range(1, 5)], 3)
            tch = self.touch_qp(1) if r == 0 else (self.touch_op() if fused else [])
            for a in range(13, 15): self.code(self.sched((tch if a == 13 else []) + self.at_body(r, a)))
            self.stamp()
            tail = self.at_body(r, 15) + self.at_epi(r)
            if r == 0:
                tail += self.dma_stage(38, ('rel', 3), 0) + self.qp_reads(35, 0) + self.shift(self.qp_body(1, 0), 48)
            elif fused:
                tail += self.op_setup_rd() + self.op_reads(0, 0) + self.shift(self.op_body(0), 48)
            self.code(self.sched(tail))
            self.stamp()
        if fused:
            self.loop("L_op", [self.sched(self.op_body(u)) for u in range(1, 7)], 4)
            for u in range(25, 31): self.code(self.sched(self.op_body(u)))
            self.stamp()
            disp = []
            for h in range(1, 4): disp += AL(f"s_cmp_eq_u32 {sHG}, {h}\ns_cbranch_scc1 L_var{h}")
            self.code(disp)
            self.variants = []
            for h in range(4):
                blk = [A(f"L_var{h}:")] + self.sched(self.op_body(31) + self.exch_send(h)) + self.exch_sync(h) + self.exch_recv(h)
                blk += AL("s_waitcnt vmcnt(0)\ns_endpgm")
                self.variants.append(blk)
            self.segs.append(('variants', self.variants))
            self.code(AL("L_end:\ns_endpgm"))
        else:
            self.code(AL("s_waitcnt vmcnt(0)\nL_end:\ns_endpgm"))

    def finish(self):
        trace = []; variants = [None]
        for sg in self.segs:
            if sg[0] == 'code': trace.append(sg[1])
            elif sg[0] == 'variants': variants = sg[1]; break
            else:
                for _ in range(sg[3]): trace += sg[2]
        for v in variants:
            tr = trace + ([v] if v else [])
            insert_vm_waits(tr)
            insert_lgkm_waits(tr)
            fix_hazards(tr)
        out = []
        for sg in self.segs:
            if sg[0] == 'code': out.append(emit(sg[1]))
            elif sg[0] == 'variants':
                for v in sg[1]: out.append(emit(v))
            else:
                out.append(f"    s_mov_b32 {sCNT}, {sg[3]}\n{sg[1]}:\n")
                for b in sg[2]: out.append(emit(b))
                out.append(f"    s_sub_u32 {sCNT}, {sCNT}, 1\n    s_cmp_lg_u32 {sCNT}, 0\n    s_cbranch_scc1 {sg[1]}\n")
        return "".join(out)

KERNEL = """.globl {k}
.p2align 8
.type {k},@function
{k}:
{body}
"""
DESC = """.amdhsa_kernel {k}
  .amdhsa_next_free_vgpr 512
  .amdhsa_next_free_sgpr 102
  .amdhsa_accum_offset 256
  .amdhsa_group_segment_fixed_size 0
  .amdhsa_kernarg_size 104
  .amdhsa_user_sgpr_count 2
  .amdhsa_user_sgpr_kernarg_segment_ptr 1
  .amdhsa_system_sgpr_workgroup_id_x 1
.end_amdhsa_kernel
"""
def main(path, opt):
    g = Gen(opt); g.build_k1(); body = g.finish()
    k = NAME + "_kernel"
    s = f"; generated by gen/gen_k.py\n; @launch grid=(256,1,1) block=(256,1,1) lds=163840\n"
    s += '.amdgcn_target "amdgcn-amd-amdhsa--gfx950"\n.text\n' + KERNEL.format(k=k, body=body)
    s += '.section .rodata,"a"\n.p2align 6\n' + DESC.format(k=k)
    open(path, 'w').write(s)
    print("stamps", g.nstamp)
    print("wrote", path, len(s), "bytes;", s.count("\n"), "lines")

if __name__ == "__main__":
    opt = {}
    for a in sys.argv[2:]:
        k, v = a.split('='); opt[k] = int(v)
    main(sys.argv[1] if len(sys.argv) > 1 else "k1.s", opt)
```

```python
import subprocess, sys
HEAD = """.amdgcn_target "amdgcn-amd-amdhsa--gfx950"
.text
.globl {name}
.p2align 8
.type {name},@function
{name}:
"""
TAIL = """
s_endpgm
.section .rodata,"a"
.p2align 6
.amdhsa_kernel {name}
  .amdhsa_next_free_vgpr {nv}
  .amdhsa_next_free_sgpr 102
  .amdhsa_accum_offset {acc}
  .amdhsa_group_segment_fixed_size 0
  .amdhsa_kernarg_size 32
  .amdhsa_user_sgpr_count 2
  .amdhsa_user_sgpr_kernarg_segment_ptr 1
  .amdhsa_system_sgpr_workgroup_id_x 1
.end_amdhsa_kernel
.amdgpu_metadata
---
amdhsa.version: [1, 2]
amdhsa.kernels:
  - .name: {name}
    .symbol: {name}.kd
    .kernarg_segment_size: 32
    .kernarg_segment_align: 8
    .group_segment_fixed_size: 0
    .private_segment_fixed_size: 0
    .wavefront_size: 64
    .sgpr_count: 102
    .vgpr_count: {nv}
    .max_flat_workgroup_size: {wg}
    .args:
      - {{.name: kernargs, .size: 32, .offset: 0, .value_kind: by_value}}
...
.end_amdgpu_metadata
"""
PRO = """
    s_load_dwordx4 s[4:7], s[0:1], 0
    s_load_dwordx4 s[8:11], s[0:1], 16
    s_waitcnt lgkmcnt(0)
    s_mov_b32 s12, s4
    s_and_b32 s13, s5, 0xffff
    s_mov_b32 s14, 0x20000000
    s_mov_b32 s15, 0x00020000
    s_mov_b32 s16, s6
    s_and_b32 s17, s7, 0xffff
    s_mov_b32 s18, 0x4000000
    s_mov_b32 s19, 0x00020000
    s_mov_b32 s20, s8
    s_and_b32 s21, s9, 0xffff
    s_mov_b32 s22, 0x100000
    s_mov_b32 s23, 0x00020000
"""
TSTART = """
    s_barrier
    s_memtime s[24:25]
    s_memrealtime s[26:27]
    s_waitcnt lgkmcnt(0)
"""
def TEND(tid="v0", tmp=("v1","v2")):
    return f"""
    s_memtime s[28:29]
    s_memrealtime s[30:31]
    s_waitcnt lgkmcnt(0)
    s_sub_u32 s28, s28, s24
    s_sub_u32 s30, s30, s26
    v_cmp_eq_u32 vcc, 0, {tid}
    s_and_saveexec_b64 s[32:33], vcc
    s_cbranch_execz L_tend
    s_lshl_b32 s34, s2, 4
    v_mov_b32 {tmp[0]}, s34
    v_mov_b32 {tmp[1]}, s28
    buffer_store_dword {tmp[1]}, {tmp[0]}, s[20:23], 0 offen
    s_nop 1
    v_mov_b32 {tmp[1]}, s30
    buffer_store_dword {tmp[1]}, {tmp[0]}, s[20:23], 0 offen offset:4
    s_waitcnt vmcnt(0)
L_tend:
    s_mov_b64 exec, s[32:33]
"""
def build(name, body, nv=512, acc=256, wg=256):
    s = HEAD.format(name=name) + body + TAIL.format(name=name, nv=nv, acc=acc, wg=wg)
    open(name + ".s", "w").write(s)
    r = subprocess.run(["clang", "-x", "assembler", "-target", "amdgcn-amd-amdhsa", "-mcpu=gfx950", name + ".s", "-o", name + ".co"], capture_output=True, text=True)
    if r.returncode:
        print(r.stderr[:3000]); sys.exit(1)
    print("built", name)
```

```python
from mbgen import *
def mk(name, pol, infl=15):
    b = PRO
    b += """
    v_and_b32 v1, 63, v0
    v_lshrrev_b32 v2, 6, v0
    s_nop 1
    v_readfirstlane_b32 s35, v2
    v_lshlrev_b32 v3, 4, v1
    s_lshl_b32 s36, s2, 20
    s_lshl_b32 s37, s35, 18
    s_add_u32 s36, s36, s37
    s_mul_i32 s38, s35, 40960
"""
    b += TSTART
    b += f"    s_mov_b32 s40, 16\n    s_mov_b32 s41, 0\n L_loop:\n"
    for u in range(16):
        b += f"    s_add_u32 m0, s38, {u * 1024}\n    s_add_u32 s42, s36, s41\n    buffer_load_dwordx4 v3, s[12:15], s42 offen{pol} lds\n    s_add_u32 s41, s41, 1024\n    s_waitcnt vmcnt({infl})\n"
    b += "    s_sub_u32 s40, s40, 1\n    s_cmp_lg_u32 s40, 0\n    s_cbranch_scc1 L_loop\n    s_waitcnt vmcnt(0)\n    s_barrier\n"
    b += TEND()
    build(name, b)
names = []
for nm, p in [("q_nt", " nt"), ("q_sc1nt", " sc1 nt"), ("q_sc01nt", " sc0 sc1 nt"), ("q_sc0nt", " sc0 nt"), ("q_sc1", " sc1"), ("q_sc01", " sc0 sc1"), ("q_pl", "")]:
    mk(nm, p); names.append(nm)
open("run_q.sh", "w").write("\n".join(f"echo {n}; timeout 120 ./runner {n}.co {n} 256 256 163840 8 1 0" for n in names + names[:2]) + "\n")
print(" ".join(f'"mb/{n}.co",' for n in names))
```
